```python
import torch

def _softmax(x, axis=-1):
    return torch.softmax(x, dim=axis)
def _gelu(x):
    return torch.nn.functional.gelu(x, approximate="tanh")
def _silu(x):
    return torch.nn.functional.silu(x)
def _sigmoid(x):
    return torch.sigmoid(x)
def _layernorm(x, axis=-1, eps=1e-5):
    m = x.mean(dim=axis, keepdim=True)
    v = x.var(dim=axis, keepdim=True, unbiased=False)
    return (x - m) / torch.sqrt(v + eps)
def _scatter_add(tgt, idx, src, axis=0):
    return tgt.clone().index_add_(axis, idx, src)
def _segment_sum(src, seg, n):
    out = torch.zeros((n,) + src.shape[1:], dtype=src.dtype)
    return out.index_add_(0, seg, src)
def _pad(x, pw):
    flat = tuple(v for pair in reversed(pw) for v in pair)
    return torch.nn.functional.pad(x, flat)

kernel_name = 'standalone__gqa_softmax__near_ridge'

def setup_inputs():

    _w = (lambda a: (lambda t: t.to(torch.bfloat16) if t.is_floating_point() else t)(torch.as_tensor(a)))
    B, Hq, Hkv, Sq, Sk, D = 64, 32, 16, 256, 256, 128
    return {
        "q": _w((lambda *s: torch.randn(*s, dtype=torch.bfloat16) * 0.8)(B, Hq, Sq, D)),
        "k": _w((lambda *s: torch.randn(*s, dtype=torch.bfloat16) * 0.8)(B, Hkv, Sk, D)),
        "v": _w((lambda *s: torch.randn(*s, dtype=torch.bfloat16) * 0.05)(B, Hkv, Sk, D)),
    }

def reference(q, k, v):
    B, Hq, Sq, D = q.shape
    Hkv = k.shape[1]
    rep = Hq // Hkv
    k = (lambda x, n, axis: torch.repeat_interleave(x, n, dim=axis))(k, rep, axis=1)
    v = (lambda x, n, axis: torch.repeat_interleave(x, n, dim=axis))(v, rep, axis=1)
    scale = D ** -0.5
    scores = torch.einsum("bhqd,bhkd->bhqk", q, k) * scale
    p = _softmax(scores, axis=-1)
    return torch.einsum("bhqk,bhkd->bhqd", p, v)
```

```python
def R(a, n=1):
    return set(range(a, a + n))
def vr(a, n=1):
    return "v%d" % a if n == 1 else "v[%d:%d]" % (a, a + n - 1)
def sr(a, n=1):
    return "s%d" % a if n == 1 else "s[%d:%d]" % (a, a + n - 1)

class Ins:
    __slots__ = ("text", "kind", "rd", "wr", "srd", "swr", "skip", "srcc", "states")
    def __init__(s, text, kind, rd=(), wr=(), srd=(), swr=(), skip=False, srcc=(), states=1):
        s.text = text; s.kind = kind; s.rd = set(rd); s.wr = set(wr)
        s.srd = set(srd); s.swr = set(swr); s.skip = skip; s.srcc = set(srcc); s.states = states

VALU = ("valu", "trans", "permlane", "readlane")
class Asm:
    def __init__(s):
        s.ins = []
        s.pend = []
        s.skip = False
    def add(s, text, kind, rd=(), wr=(), srd=(), swr=(), srcc=(), states=1):
        rd = set(rd); wr = set(wr)
        touch = rd | wr
        need = -1
        for i, d in enumerate(s.pend):
            if d & touch:
                if kind == "ds" and not (d & rd):
                    continue
                need = i
        if need >= 0:
            n = len(s.pend) - 1 - need
            s.ins.append(Ins("s_waitcnt lgkmcnt(%d)" % min(n, 15), "wait", skip=s.skip))
            s.pend = s.pend[len(s.pend) - min(n, 15):] if n else []
        if kind == "ds":
            if len(s.pend) >= 15:
                s.ins.append(Ins("s_waitcnt lgkmcnt(14)", "wait", skip=s.skip))
                s.pend = s.pend[-14:]
            s.pend.append(set(wr))
        s.ins.append(Ins(text, kind, rd, wr, srd, swr, s.skip, srcc, states))
    def wait_ds(s, regs):
        need = -1
        for i, d in enumerate(s.pend):
            if d & set(regs): need = i
        if need >= 0:
            n = len(s.pend) - 1 - need
            s.ins.append(Ins("s_waitcnt lgkmcnt(%d)" % n, "wait", skip=s.skip))
            s.pend = s.pend[len(s.pend) - n:] if n else []
    def lgkm0(s):
        s.ins.append(Ins("s_waitcnt lgkmcnt(0)", "wait", skip=s.skip)); s.pend = []
    def vm(s, n):
        assert 0 <= n <= 63
        s.ins.append(Ins("s_waitcnt vmcnt(%d)" % n, "wait", skip=s.skip))
    def label(s, name):
        s.ins.append(Ins(name + ":", "label", states=0))
    def comment(s, t):
        s.ins.append(Ins("; " + t, "label", states=0))
    def salu(s, text, srd=(), swr=()):
        s.add(text, "salu", srd=srd, swr=swr)
    def nop(s, n):
        s.ins.append(Ins("s_nop %d" % (n - 1), "nop", states=n, skip=s.skip))
    def barrier(s):
        s.add("s_barrier", "barrier")
    def v(s, op, d, *srcs, kind="valu", dn=1, extra="", rmw=False):
        rd = set(); t = []; srd = set()
        for x in srcs:
            if isinstance(x, int): rd.add(x); t.append(vr(x))
            elif isinstance(x, tuple): rd |= R(*x); t.append(vr(*x))
            else:
                t.append(x)
                y = x.lstrip("-")
                if y.startswith("v") and y[1:].isdigit(): rd.add(int(y[1:]))
                if y.startswith("s") and y[1:].isdigit(): srd.add(int(y[1:]))
        if rmw: rd |= R(d, dn)
        s.add("%s %s, %s%s" % (op, vr(d, dn), ", ".join(t), extra), kind, rd=rd, wr=R(d, dn), srd=srd)
    def mfma(s, d, a, b, c=None):
        rd = R(a, 4) | R(b, 4)
        srcc = set()
        if c is not None: rd |= R(c, 16); srcc = R(c, 16)
        s.add("v_mfma_f32_32x32x16_bf16 %s, %s, %s, %s" % (vr(d, 16), vr(a, 4), vr(b, 4), vr(c, 16) if c is not None else "0"),
              "mfma", rd=rd, wr=R(d, 16), srcc=srcc)
    def ds_read128(s, d, addr, off=0):
        s.add("ds_read_b128 %s, %s offset:%d" % (vr(d, 4), vr(addr), off), "ds", rd={addr}, wr=R(d, 4))
    def ds_read_tr(s, d, addr, off=0):
        s.add("ds_read_b64_tr_b16 %s, %s offset:%d" % (vr(d, 2), vr(addr), off), "ds", rd={addr}, wr=R(d, 2))
    def ds_write128(s, addr, src, off=0):
        s.add("ds_write_b128 %s, %s offset:%d" % (vr(addr), vr(src, 4), off), "ds", rd={addr} | R(src, 4))
    def bload(s, d, voff, srd, soff, off=0, fl=""):
        s.add("buffer_load_dwordx4 %s, %s, %s, %s offen offset:%d%s" % (vr(d, 4), vr(voff), sr(srd, 4), soff, off, fl),
              "vload", rd={voff}, wr=R(d, 4), srd=R(srd, 4) | ({int(soff[1:])} if soff[0] == "s" else set()))
    def bdma(s, voff, srd, soff, off=0, fl=""):
        s.add("buffer_load_dwordx4 %s, %s, %s offen offset:%d%s lds" % (vr(voff), sr(srd, 4), soff, off, fl),
              "dma", rd={voff}, srd=R(srd, 4) | {"m0"} | ({int(soff[1:])} if soff[0] == "s" else set()))
    def bstore(s, src, voff, srd, soff, off=0, fl=""):
        s.add("buffer_store_dwordx4 %s, %s, %s, %s offen offset:%d%s" % (vr(src, 4), vr(voff), sr(srd, 4), soff, off, fl),
              "vstore", rd={voff} | R(src, 4), srd=R(srd, 4) | ({int(soff[1:])} if soff[0] == "s" else set()), srcc=R(src, 4))

def required(p, c):
    n = 0
    mem = c.kind in ("ds", "vload", "dma", "vstore")
    if p.kind in VALU:
        if c.kind == "mfma" and p.wr & c.rd: n = max(n, 2)
        if c.kind == "permlane" and p.wr & (c.rd | c.wr): n = max(n, 2)
        if c.kind == "readlane" and p.wr & c.rd: n = max(n, 1)
        if p.kind == "trans" and c.kind in VALU and p.wr & c.rd: n = max(n, 1)
        if p.swr & c.srd:
            if mem: n = max(n, 5)
            elif c.kind in VALU: n = max(n, 2)
            elif c.kind == "salu": n = max(n, 2)
    if p.kind == "mfma":
        if c.kind == "mfma":
            if p.wr & (c.rd - c.srcc): n = max(n, 12)
            if p.wr & c.srcc and p.wr != c.srcc: n = max(n, 10)
            if p.wr & c.wr and not (p.wr == c.srcc): n = max(n, 12)
        elif c.kind in VALU or mem:
            if p.wr & (c.rd | c.wr): n = max(n, 12)
            if c.kind in VALU and p.srcc & c.wr: n = max(n, 7)
    if p.kind == "vstore" and p.srcc & c.wr:
        n = max(n, 2)
    if p.kind == "salu" and "m0" in p.swr and c.kind == "dma": n = max(n, 1)
    return n

def pad_hazards(ins, verify=False):
    out = []
    added = 0
    for c in ins:
        if c.kind not in ("label", "nop", "wait"):
            dist = 0; need = 0
            for p in reversed(out):
                if dist >= 12: break
                r = required(p, c)
                if r > dist: need = max(need, r - dist)
                if not p.skip: dist += p.states
            if need:
                if verify: raise RuntimeError("hazard before: %s (need %d)" % (c.text, need))
                out.append(Ins("s_nop %d" % (need - 1), "nop", states=need, skip=c.skip)); added += need
        out.append(c)
    return out, added

def render(ins):
    L = []
    for i in ins:
        L.append(i.text if i.kind == "label" and not i.text.startswith(";") else "    " + i.text)
    return "\n".join(L)
```

```python
import sys, math, struct, json
from asmlib import *

DEF = dict(
    q_staged=1, o_staged=1,
    fl_q="", fl_k="", fl_v="", fl_o="",
    qa_pos="postqk",
    qb_pos="postpv",
    compute=1,
    stamps=0,
    pd=7,
    prio=0,
    seq=0,
)

def f2u(x): return struct.unpack("<I", struct.pack("<f", x))[0]

def gen(**kw):
    o = dict(DEF); o.update(kw)
    for k in kw: assert k in DEF, k
    a = Asm()
    S = 0; P = 0; O = 64
    QA = 128; QB = 160
    FR = 192
    KAD = 224
    VAD = 232
    VK0 = 236; VV = 237
    VQ0 = 238; VQ1 = 239
    QRD = 240
    LIN = 241
    OWR = 242
    VO = 243
    M = 244; M2 = 245
    SUM = 246
    T0 = 250; T1 = 251; T2 = 252; T3 = 253
    STAMP = 254
    SQ, SK, SV, SO = 12, 16, 20, 24
    sW, sIT = 28, 29
    sQ = 30
    sKV = 34
    sO = 36
    sC = 40; sM0 = 41
    sST = 44; sSI = 46
    qstep = 131072 if o["seq"] else 256 * 131072

    vmseq = []
    nlab = [0]
    def vm_issue(tag, n): vmseq.append(("issue", tag, n))
    def vm_wait(*tags):
        ph = Ins("VMWAIT", "wait"); a.ins.append(ph); vmseq.append(("wait", tags, ph))
    def stamp():
        if not o["stamps"]: return
        a.lgkm0()
        a.salu("s_memtime s[44:45]")
        a.lgkm0()
        a.salu("s_mov_b32 m0, s46", swr={"m0"})
        a.add("v_writelane_b32 v%d, s44, m0" % STAMP, "valu", wr={STAMP})
        a.salu("s_add_u32 s46, s46, 1")

    def issue_q(buf, head, tag):
        so = sQ + 2 * head
        if o["q_staged"]:
            for Rr in range(2):
                for j in range(4):
                    a.bload(buf + 16 * Rr + 4 * j, VQ0 + (j & 1), SQ, sr(so + (j >> 1)), (j & 1) * 2048 + Rr * 128, o["fl_q"])
        else:
            for s_ in range(8):
                a.bload(buf + 4 * s_, VQ0, SQ, sr(so), s_ * 32, o["fl_q"])
        vm_issue(tag, 8)
    def issue_k():
        for jj in range(1, 4):
            a.v("v_xor_b32", T0 + jj - 1, str(jj * 64) if jj == 1 else hex(jj * 64), VK0)
        for hi in range(2):
            a.salu("s_add_u32 m0, s%d, %d" % (sM0, hi * 4096), swr={"m0"})
            for jj in range(4):
                a.bdma(VK0 if jj == 0 else T0 + jj - 1, SK, sr(sKV + hi), jj * 1024, o["fl_k"])
        vm_issue("K", 8)
    def issue_v():
        for hi in range(2):
            a.salu("s_add_u32 m0, s%d, %d" % (sM0, 65536 + hi * 4096), swr={"m0"})
            for jj in range(4):
                a.bdma(VV, SV, sr(sKV + hi), jj * 1024, o["fl_v"])
        vm_issue("V", 8)
    def restage_q(buf):
        if not o["q_staged"]: return
        for s_ in range(1, 4):
            a.v("v_xor_b32", T0 + s_ - 1, str(s_ * 32) if s_ < 3 else hex(s_ * 32), QRD)
        for Rr in range(2):
            for j in range(4):
                a.ds_write128(LIN, buf + 16 * Rr + 4 * j, j * 1024)
            for s_ in range(4):
                a.ds_read128(buf + 16 * Rr + 4 * s_, QRD if s_ == 0 else T0 + s_ - 1)
    def qk(buf):
        PD = o["pd"]; NF = 8
        def rd(n):
            kt, s_ = divmod(n, 8)
            a.ds_read128(FR + 4 * (n % NF), KAD + s_, kt * 8192)
        for n in range(PD): rd(n)
        mq = []
        first = True
        for n in range(64):
            kt, s_ = divmod(n, 8)
            a.mfma(S + 16 * kt, FR + 4 * (n % NF), buf + 4 * s_, None if s_ == 0 else S + 16 * kt)
            if n + PD < 64: rd(n + PD)
            if kt >= 1 and s_ >= 4:
                b = S + 16 * (kt - 1) + 4 * (s_ - 4)
                for x in range(2):
                    mreg = M + x
                    if kt == 1 and s_ == 4:
                        a.v("v_max_f32", mreg, b + 2 * x, b + 2 * x + 1)
                    else:
                        a.v("v_max3_f32", mreg, mreg, b + 2 * x, b + 2 * x + 1)
    def qk_tail():
        b = S + 16 * 7
        for x in range(8):
            mreg = M + (x & 1)
            a.v("v_max3_f32", mreg, mreg, b + 2 * x, b + 2 * x + 1)
        a.v("v_max_f32", M, M, M2)
        a.v("v_mov_b32", M2, M)
        a.add("v_permlane32_swap_b32 v%d, v%d" % (M, M2), "permlane", rd={M, M2}, wr={M, M2})
        a.v("v_max_f32", M, M, M2)
        a.v("v_mul_f32", M, sr(sC), M)
    def softmax():
        for j in range(16):
            b = S + 8 * j
            for x in range(8): a.v("v_fma_f32", b + x, b + x, sr(sC), "-v%d" % M)
            for x in range(8): a.v("v_exp_f32", b + x, b + x, kind="trans")
            for x in range(4):
                for y in range(2):
                    acc = SUM + ((2 * x + y) & 3)
                    if j == 0 and x < 2: a.v("v_mov_b32", acc, b + 2 * x + y)
                    else: a.v("v_add_f32", acc, acc, b + 2 * x + y)
                a.v("v_cvt_pk_bf16_f32", P + 4 * j + x, b + 2 * x, b + 2 * x + 1)
        a.v("v_add_f32", SUM, SUM, SUM + 1)
        a.v("v_add_f32", SUM + 2, SUM + 2, SUM + 3)
        a.v("v_add_f32", SUM, SUM, SUM + 2)
        a.v("v_mov_b32", SUM + 1, SUM)
        a.add("v_permlane32_swap_b32 v%d, v%d" % (SUM, SUM + 1), "permlane", rd={SUM, SUM + 1}, wr={SUM, SUM + 1})
        a.v("v_add_f32", SUM, SUM, SUM + 1)
        a.v("v_rcp_f32", SUM, SUM, kind="trans")
    def pv():
        PD = min(o["pd"], 7); NF = 8
        def rd(n):
            j, t = divmod(n, 4)
            for u in range(2):
                a.ds_read_tr(FR + 4 * (n % NF) + 2 * u, VAD + t, j * 4096 + u * 2048)
        for n in range(PD): rd(n)
        for n in range(64):
            j, t = divmod(n, 4)
            a.mfma(O + 16 * t, FR + 4 * (n % NF), P + 4 * j, None if j == 0 else O + 16 * t)
            if n + PD < 64: rd(n + PD)
    def epilogue(head, tag):
        so = sO + 2 * head
        if o["o_staged"]:
            for x in range(1, 4):
                a.v("v_xor_b32", T0 + x - 1, str(x * 32) if x < 3 else hex(x * 32), OWR)
        for Rr in range(2):
            for tt in range(2):
                t = 2 * Rr + tt
                for e in range(2):
                    b = O + 16 * t + 8 * e
                    d = 16 * Rr + 8 * tt + 4 * e
                    if o["compute"]:
                        for x in range(8): a.v("v_mul_f32", b + x, b + x, SUM)
                        for x in range(4): a.v("v_cvt_pk_bf16_f32", d + x, b + 2 * x, b + 2 * x + 1)
                    if o["o_staged"]:
                        x = 2 * tt + e
                        a.ds_write128(OWR if x == 0 else T0 + x - 1, d)
                    else:
                        a.bstore(d, VO, SO, sr(so), t * 64 + e * 32, o["fl_o"])
            if o["o_staged"]:
                for j in range(4): a.ds_read128(32 + 16 * Rr + 4 * j, LIN, j * 1024)
                if Rr == 1:
                    for R2 in range(2):
                        for j in range(4):
                            a.bstore(32 + 16 * R2 + 4 * j, VO, SO, sr(so + (j >> 1)), (j & 1) * 2048 + R2 * 128, o["fl_o"])
        vm_issue(tag, 8)

    a.salu("s_cmp_ge_u32 s2, 0x100")
    a.add("s_cbranch_scc1 L_end", "branch")
    a.salu("s_load_dwordx8 s[4:11], s[0:1], 0")
    if o["stamps"]: a.salu("s_load_dwordx2 s[48:49], s[0:1], 40")
    a.v("v_lshrrev_b32", T0, "6", 0)
    a.v("v_and_b32", 1, "63", 0)
    a.add("v_readfirstlane_b32 s%d, v%d" % (sW, T0), "readlane", rd={T0}, swr={sW})
    L = 1
    a.v("v_lshrrev_b32", 2, "4", L)
    a.v("v_and_b32", 3, "15", L)
    a.v("v_and_b32", 4, "31", L)
    a.v("v_lshrrev_b32", 5, "5", L)
    a.v("v_lshrrev_b32", 6, "3", L)
    a.v("v_and_b32", 7, "7", L)
    a.v("v_xor_b32", 8, 3, 2); a.v("v_lshlrev_b32", 8, "4", 8); a.v("v_lshl_add_u32", VK0, 2, "8", 8)
    a.v("v_lshlrev_b32", 8, "2", 2); a.v("v_xor_b32", 8, 3, 8); a.v("v_lshlrev_b32", 8, "4", 8); a.v("v_lshl_add_u32", VV, 2, "8", 8)
    a.salu("s_lshl_b32 s%d, s%d, 13" % (sM0, sW), srd={sW}, swr={sM0})
    a.salu("s_lshl_b32 s42, s%d, 12" % sW, srd={sW}, swr={42})
    a.salu("s_add_u32 s42, s42, 0x20000", swr={42})
    if o["q_staged"]:
        a.v("v_xor_b32", 8, 7, 2); a.v("v_lshlrev_b32", 8, "4", 8); a.v("v_lshl_add_u32", VQ0, 6, "8", 8)
        a.v("v_xor_b32", VQ1, "64", VQ0)
    else:
        a.v("v_lshlrev_b32", 8, "4", 5); a.v("v_lshl_add_u32", VQ0, 4, "8", 8)
    if o["seq"]:
        a.salu("s_lshl_b32 s3, s2, 2", swr={3})
    else:
        a.salu("s_mov_b32 s3, s2", swr={3})
    a.salu("s_lshl_b32 s%d, s3, 17" % sQ); a.salu("s_add_u32 s%d, s%d, s%d" % (sQ, sQ, sM0))
    a.salu("s_add_u32 s%d, s%d, 0x1000" % (sQ + 1, sQ)); a.salu("s_add_u32 s%d, s%d, 0x10000" % (sQ + 2, sQ)); a.salu("s_add_u32 s%d, s%d, 0x11000" % (sQ + 3, sQ))
    a.salu("s_lshl_b32 s%d, s3, 16" % sKV); a.salu("s_add_u32 s%d, s%d, s%d" % (sKV, sKV, sM0)); a.salu("s_add_u32 s%d, s%d, 0x1000" % (sKV + 1, sKV))
    a.salu("s_mov_b32 s%d, 0x%08x" % (sC, f2u(128 ** -0.5 * math.log2(math.e))))
    a.salu("s_mov_b32 s%d, 0" % sIT)
    a.lgkm0()
    for srd, ptr, nb in ((SQ, 4, 1 << 27), (SK, 6, 1 << 26), (SV, 8, 1 << 26), (SO, 10, 1 << 27)):
        a.salu("s_mov_b32 s%d, s%d" % (srd, ptr)); a.salu("s_and_b32 s%d, s%d, 0xffff" % (srd + 1, ptr + 1))
        a.salu("s_mov_b32 s%d, 0x%x" % (srd + 2, nb)); a.salu("s_mov_b32 s%d, 0x20000" % (srd + 3))
    if o["stamps"]:
        a.salu("s_mov_b32 s46, 0"); a.v("v_mov_b32", STAMP, "0")
        stamp()
    issue_k()
    issue_q(QA, 0, "QA")
    issue_v()
    issue_q(QB, 1, "QB")
    a.v("v_xor_b32", 8, 5, 3); a.v("v_lshlrev_b32", 8, "4", 8); a.v("v_lshl_add_u32", KAD, 4, "8", 8)
    for s_ in range(1, 8): a.v("v_xor_b32", KAD + s_, str(s_ * 32) if s_ < 3 else hex(s_ * 32), KAD)
    a.v("v_bfe_u32", 8, L, "2", "2")
    a.v("v_lshl_add_u32", 9, 5, "2", 8)
    a.v("v_lshlrev_b32", 9, "8", 9)
    a.v("v_lshl_add_u32", 9, 8, "6", 9)
    a.v("v_and_b32", 8, "1", 2); a.v("v_lshl_add_u32", 9, 8, "5", 9)
    a.v("v_and_b32", 8, "1", L); a.v("v_lshl_add_u32", 9, 8, "4", 9)
    a.v("v_bfe_u32", 8, L, "1", "1"); a.v("v_lshl_add_u32", 9, 8, "3", 9)
    a.v("v_add_u32", VAD, "0x10000", 9)
    for t in range(1, 4): a.v("v_xor_b32", VAD + t, str(t * 64) if t == 1 else hex(t * 64), VAD)
    a.v("v_lshlrev_b32", 8, "4", L); a.v("v_add_u32", LIN, "s42", 8)
    a.v("v_bfe_u32", 8, L, "1", "3"); a.v("v_xor_b32", 8, 8, 5); a.v("v_lshlrev_b32", 8, "4", 8)
    a.v("v_lshl_add_u32", 8, 4, "7", 8); a.v("v_add_u32", QRD, "s42", 8)
    a.v("v_xor_b32", 8, 7, 5); a.v("v_lshlrev_b32", 8, "4", 8)
    a.v("v_lshl_add_u32", 8, 4, "7", 8); a.v("v_add_u32", OWR, "s42", 8)
    if o["o_staged"]:
        a.v("v_xor_b32", 8, 7, 6); a.v("v_lshlrev_b32", 8, "4", 8); a.v("v_lshl_add_u32", VO, 6, "8", 8)
    else:
        a.v("v_lshlrev_b32", 8, "4", 5); a.v("v_lshl_add_u32", VO, 4, "8", 8)
    if o["prio"]:
        a.salu("s_cmp_ge_u32 s%d, 4" % sW)
        a.add("s_cbranch_scc%d L_prio" % (0 if o["prio"] == 1 else 1), "branch")
        a.skip = True; a.salu("s_setprio 1"); a.skip = False
        a.label("L_prio")
    nprolog = len(a.ins)
    vmseq.append(("loop",))
    a.label("L_loop")
    for x in range(4): a.salu("s_mov_b32 s%d, s%d" % (sO + x, sQ + x))
    for x in range(4): a.salu("s_add_u32 s%d, s%d, 0x%x" % (sQ + x, sQ + x, qstep))
    for x in range(2): a.salu("s_add_u32 s%d, s%d, 0x%x" % (sKV + x, sKV + x, qstep // 2))
    a.salu("s_cmp_eq_u32 s%d, 3" % sIT)
    for srd in (SQ, SK, SV): a.salu("s_cselect_b32 s%d, 0, s%d" % (srd + 2, srd + 2))
    C = o["compute"]
    for head in range(2):
        buf = QA if head == 0 else QB
        tag = "QA" if head == 0 else "QB"
        pos = o["qa_pos"] if head == 0 else o["qb_pos"]
        a.comment("---- pass %d" % head)
        if head == 0:
            vm_wait("QA"); restage_q(buf)
            vm_wait("K"); a.barrier()
        else:
            vm_wait("QB"); restage_q(buf)
        stamp()
        if C: qk(buf)
        a.lgkm0()
        stamp()
        if head == 1:
            a.barrier(); issue_k()
        if pos == "postqk": issue_q(buf, head, tag)
        if C: qk_tail(); softmax()
        if pos == "postsm": issue_q(buf, head, tag)
        stamp()
        if head == 0:
            vm_wait("V"); a.barrier()
        stamp()
        if C: pv()
        a.lgkm0()
        stamp()
        if head == 1:
            a.barrier(); issue_v()
        if pos == "postpv": issue_q(buf, head, tag)
        epilogue(head, "OA" if head == 0 else "OB")
        if pos == "postep": issue_q(buf, head, tag)
        stamp()
    a.lgkm0()
    a.salu("s_add_u32 s%d, s%d, 1" % (sIT, sIT))
    a.salu("s_cmp_lt_u32 s%d, 4" % sIT)
    a.add("s_cbranch_scc1 L_loop", "branch")
    nbody_end = len(a.ins)
    a.vm(0)
    if o["stamps"]:
        stamp()
        a.salu("s_mov_b32 s52, s48"); a.salu("s_and_b32 s53, s49, 0xffff"); a.salu("s_mov_b32 s54, 0x1000000"); a.salu("s_mov_b32 s55, 0x20000")
        a.salu("s_lshl_b32 s47, s2, 3"); a.salu("s_add_u32 s47, s47, s%d" % sW); a.salu("s_lshl_b32 s47, s47, 8")
        a.add("v_mbcnt_lo_u32_b32 v1, -1, 0", "valu", wr={1}); a.add("v_mbcnt_hi_u32_b32 v1, -1, v1", "valu", rd={1}, wr={1})
        a.v("v_lshlrev_b32", 1, "2", 1)
        a.add("buffer_store_dword v%d, v1, s[52:55], s47 offen" % STAMP, "vstore", rd={1, STAMP})
        a.vm(0)
    a.label("L_end")
    a.add("s_endpgm", "branch")

    li = vmseq.index(("loop",))
    pro, body = vmseq[:li], vmseq[li + 1:]
    hist = []
    res = {}
    for it, seq in enumerate([pro, body, body, body]):
        for ev in seq:
            if ev[0] == "issue": hist.append((ev[1], ev[2]))
            else:
                n = None
                for tg in ev[1]:
                    c = 0
                    for t2, k2 in reversed(hist):
                        if t2 == tg: break
                        c += k2
                    else: raise RuntimeError("no issue of " + tg)
                    n = c if n is None else min(n, c)
                res.setdefault(id(ev[2]), []).append(n)
    out = []
    for idx, i in enumerate(a.ins):
        if i.text == "VMWAIT":
            f, s1, s2 = res[id(i)]
            assert s1 == s2
            if f == s1: out.append(Ins("s_waitcnt vmcnt(%d)" % s1, "wait"))
            else:
                lo, hi = min(f, s1), max(f, s1)
                nlab[0] += 1
                out.append(Ins("s_waitcnt vmcnt(%d)" % hi, "wait"))
                out.append(Ins("s_cmp_%s_u32 s%d, 0" % ("lg" if f < s1 else "eq", sIT), "salu"))
                out.append(Ins("s_cbranch_scc1 L_w%d" % nlab[0], "branch"))
                out.append(Ins("s_waitcnt vmcnt(%d)" % lo, "wait", skip=True))
                out.append(Ins("L_w%d:" % nlab[0], "label", states=0))
        else: out.append(i)
    out, added = pad_hazards(out)
    i0 = [k for k, i in enumerate(out) if i.text == "L_loop:"][0]
    i1 = [k for k, i in enumerate(out) if i.text == "s_cbranch_scc1 L_loop"][0]
    pad_hazards(out[:i1 + 1] + out[i0:], verify=True)
    hdr = open("standalone__gqa_softmax__near_ridge.s.ref").read().split("\n")
    head = [l for l in hdr if l.startswith(";") and "@launch" not in l][:9]
    txt = "\n".join(head) + "\n; @launch grid=(256,1,1) block=(512,1,1) lds=163840\n"
    txt += "; generated by my own generator script (options: %s)\n" % json.dumps(o)
    KN = "standalone__gqa_softmax__near_ridge_kernel"
    txt += '.amdgcn_target "amdgcn-amd-amdhsa--gfx950"\n.text\n.globl %s\n.p2align 8\n.type %s,@function\n%s:\n' % (KN, KN, KN)
    txt += render(out) + "\n"
    txt += """.section .rodata,"a"
.p2align 6
.amdhsa_kernel %s
  .amdhsa_next_free_vgpr 256
  .amdhsa_next_free_sgpr 64
  .amdhsa_accum_offset 256
  .amdhsa_group_segment_fixed_size 0
  .amdhsa_kernarg_size 48
  .amdhsa_user_sgpr_count 2
  .amdhsa_user_sgpr_kernarg_segment_ptr 1
  .amdhsa_system_sgpr_workgroup_id_x 1
.end_amdhsa_kernel
""" % KN
    return txt, added, len(out)

if __name__ == "__main__":
    outf = sys.argv[1]
    kw = {}
    for x in sys.argv[2:]:
        k, v = x.split("=", 1)
        if k.startswith("fl_"): v = (" " + v.replace("+", " ")) if v else ""
        elif v.lstrip("-").isdigit(): v = int(v)
        kw[k] = v
    txt, added, n = gen(**kw)
    open(outf, "w").write(txt)
    print(outf, "instrs", n, "nop states added", added)
```

```python
def R(a, n=1):
    return set(range(a, a + n))
def vr(a, n=1):
    return "v%d" % a if n == 1 else "v[%d:%d]" % (a, a + n - 1)
def sr(a, n=1):
    return "s%d" % a if n == 1 else "s[%d:%d]" % (a, a + n - 1)

class Ins:
    __slots__ = ("text", "kind", "rd", "wr", "srd", "swr", "skip", "srcc", "states")
    def __init__(s, text, kind, rd=(), wr=(), srd=(), swr=(), skip=False, srcc=(), states=1):
        s.text = text; s.kind = kind; s.rd = set(rd); s.wr = set(wr)
        s.srd = set(srd); s.swr = set(swr); s.skip = skip; s.srcc = set(srcc); s.states = states

VALU = ("valu", "trans", "permlane", "readlane", "dpp")
class Asm:
    def __init__(s):
        s.ins = []
        s.pend = []
        s.skip = False
    def add(s, text, kind, rd=(), wr=(), srd=(), swr=(), srcc=(), states=1):
        rd = set(rd); wr = set(wr)
        touch = rd | wr
        need = -1
        for i, d in enumerate(s.pend):
            if d & touch:
                if kind == "ds" and not (d & rd):
                    continue
                need = i
        if need >= 0:
            n = len(s.pend) - 1 - need
            s.ins.append(Ins("s_waitcnt lgkmcnt(%d)" % min(n, 15), "wait", skip=s.skip))
            s.pend = s.pend[len(s.pend) - min(n, 15):] if n else []
        if kind == "ds":
            if len(s.pend) >= 15:
                s.ins.append(Ins("s_waitcnt lgkmcnt(14)", "wait", skip=s.skip))
                s.pend = s.pend[-14:]
            s.pend.append(set(wr))
        s.ins.append(Ins(text, kind, rd, wr, srd, swr, s.skip, srcc, states))
    def wait_ds(s, regs):
        need = -1
        for i, d in enumerate(s.pend):
            if d & set(regs): need = i
        if need >= 0:
            n = len(s.pend) - 1 - need
            s.ins.append(Ins("s_waitcnt lgkmcnt(%d)" % n, "wait", skip=s.skip))
            s.pend = s.pend[len(s.pend) - n:] if n else []
    def lgkm0(s):
        s.ins.append(Ins("s_waitcnt lgkmcnt(0)", "wait", skip=s.skip)); s.pend = []
    def vm(s, n):
        assert 0 <= n <= 63
        s.ins.append(Ins("s_waitcnt vmcnt(%d)" % n, "wait", skip=s.skip))
    def label(s, name):
        s.ins.append(Ins(name + ":", "label", states=0))
    def comment(s, t):
        s.ins.append(Ins("; " + t, "label", states=0))
    def salu(s, text, srd=(), swr=()):
        s.add(text, "salu", srd=srd, swr=swr)
    def nop(s, n):
        s.ins.append(Ins("s_nop %d" % (n - 1), "nop", states=n, skip=s.skip))
    def barrier(s):
        s.add("s_barrier", "barrier")
    def v(s, op, d, *srcs, kind="valu", dn=1, extra="", rmw=False):
        rd = set(); t = []; srd = set()
        for x in srcs:
            if isinstance(x, int): rd.add(x); t.append(vr(x))
            elif isinstance(x, tuple): rd |= R(*x); t.append(vr(*x))
            else:
                t.append(x)
                y = x.lstrip("-")
                if y.startswith("v") and y[1:].isdigit(): rd.add(int(y[1:]))
                if y.startswith("s") and y[1:].isdigit(): srd.add(int(y[1:]))
        if rmw: rd |= R(d, dn)
        s.add("%s %s, %s%s" % (op, vr(d, dn), ", ".join(t), extra), kind, rd=rd, wr=R(d, dn), srd=srd)
    def mfma(s, d, a, b, c=None):
        rd = R(a, 4) | R(b, 4)
        srcc = set()
        if c is not None: rd |= R(c, 16); srcc = R(c, 16)
        s.add("v_mfma_f32_32x32x16_bf16 %s, %s, %s, %s" % (vr(d, 16), vr(a, 4), vr(b, 4), vr(c, 16) if c is not None else "0"),
              "mfma", rd=rd, wr=R(d, 16), srcc=srcc)
    def mfma16(s, d, a, b, c=None):
        rd = R(a, 4) | R(b, 4)
        srcc = set()
        if c is not None: rd |= R(c, 4); srcc = R(c, 4)
        s.add("v_mfma_f32_16x16x32_bf16 %s, %s, %s, %s" % (vr(d, 4), vr(a, 4), vr(b, 4), vr(c, 4) if c is not None else "0"),
              "mfma", rd=rd, wr=R(d, 4), srcc=srcc)
    def ds_write64(s, addr, src, off=0):
        s.add("ds_write_b64 %s, %s offset:%d" % (vr(addr), vr(src, 2), off), "ds", rd={addr} | R(src, 2))
    def ds_read128(s, d, addr, off=0):
        s.add("ds_read_b128 %s, %s offset:%d" % (vr(d, 4), vr(addr), off), "ds", rd={addr}, wr=R(d, 4))
    def ds_read_tr(s, d, addr, off=0):
        s.add("ds_read_b64_tr_b16 %s, %s offset:%d" % (vr(d, 2), vr(addr), off), "ds", rd={addr}, wr=R(d, 2))
    def ds_write128(s, addr, src, off=0):
        s.add("ds_write_b128 %s, %s offset:%d" % (vr(addr), vr(src, 4), off), "ds", rd={addr} | R(src, 4))
    def bload(s, d, voff, srd, soff, off=0, fl=""):
        s.add("buffer_load_dwordx4 %s, %s, %s, %s offen offset:%d%s" % (vr(d, 4), vr(voff), sr(srd, 4), soff, off, fl),
              "vload", rd={voff}, wr=R(d, 4), srd=R(srd, 4) | ({int(soff[1:])} if soff[0] == "s" else set()))
    def bdma(s, voff, srd, soff, off=0, fl=""):
        s.add("buffer_load_dwordx4 %s, %s, %s offen offset:%d%s lds" % (vr(voff), sr(srd, 4), soff, off, fl),
              "dma", rd={voff}, srd=R(srd, 4) | {"m0"} | ({int(soff[1:])} if soff[0] == "s" else set()))
    def bstore(s, src, voff, srd, soff, off=0, fl=""):
        s.add("buffer_store_dwordx4 %s, %s, %s, %s offen offset:%d%s" % (vr(src, 4), vr(voff), sr(srd, 4), soff, off, fl),
              "vstore", rd={voff} | R(src, 4), srd=R(srd, 4) | ({int(soff[1:])} if soff[0] == "s" else set()), srcc=R(src, 4))

def required(p, c):
    n = 0
    mem = c.kind in ("ds", "vload", "dma", "vstore")
    if p.kind in VALU:
        if c.kind == "mfma" and p.wr & c.rd: n = max(n, 2)
        if c.kind == "permlane" and p.wr & (c.rd | c.wr): n = max(n, 2)
        if c.kind == "dpp" and p.wr & c.rd: n = max(n, 2)
        if c.kind == "readlane" and p.wr & c.rd: n = max(n, 1)
        if p.kind == "trans" and c.kind in VALU and p.wr & c.rd: n = max(n, 1)
        if p.swr & c.srd:
            if mem: n = max(n, 5)
            elif c.kind in VALU: n = max(n, 2)
            elif c.kind == "salu": n = max(n, 2)
    if p.kind == "mfma":
        big = len(p.wr) == 16
        raw, part, war = (12, 10, 7) if big else (8, 6, 3)
        if c.kind == "mfma":
            if p.wr & (c.rd - c.srcc): n = max(n, raw)
            if p.wr & c.srcc and p.wr != c.srcc: n = max(n, part)
            if p.wr & c.wr and not (p.wr == c.srcc): n = max(n, raw)
        elif c.kind in VALU or mem:
            if p.wr & (c.rd | c.wr): n = max(n, raw)
            if c.kind in VALU and p.srcc & c.wr: n = max(n, war)
    if p.kind == "vstore" and p.srcc & c.wr:
        n = max(n, 2)
    if p.kind == "salu" and "m0" in p.swr and c.kind == "dma": n = max(n, 1)
    return n

def pad_hazards(ins, verify=False):
    out = []
    added = 0
    for c in ins:
        if c.kind not in ("label", "nop", "wait"):
            dist = 0; need = 0; inreg = (c.skip is True)
            for p in reversed(out):
                if dist >= 12: break
                r = required(p, c)
                if r > dist: need = max(need, r - dist)
                if p.kind == "label": continue
                if not p.skip:
                    dist += p.states; inreg = False
                elif p.skip is True and inreg: dist += p.states
            if need:
                if verify: raise RuntimeError("hazard before: %s (need %d)" % (c.text, need))
                out.append(Ins("s_nop %d" % (need - 1), "nop", states=need, skip=c.skip)); added += need
        out.append(c)
    return out, added

def render(ins):
    L = []
    for i in ins:
        L.append(i.text if i.kind == "label" and not i.text.startswith(";") else "    " + i.text)
    return "\n".join(L)
```

```python
import sys, math, struct, json, re
from asmlib import *

DEF = dict(
    fl_q=" nt", fl_k=" nt", fl_v=" nt", fl_o=" nt",
    compute=1, stamps=0, pd=6, nomem=0, swap=0,
    p_lead_ep=0, p_lead_sm=0, p_lag_ep=1, p_lag_sm=1, p_lead_qk=2, p_lag_qk=2, p_lead_pv=3, p_lag_pv=3,
    grp=2,
    vsplit="lag", ksplit="both",
    kspread=4, vspread=4,
    lead_qa="pvA4,qkB4", lead_qb="smB8", lag_qa="pvA4,qkB4", lag_qb="c,smA8",
    lead_da=0, lead_db=0, lag_da=0, lag_db=8,
    dspan=44, xcd=1, tmap=1, pre=1, snake=1,
    gshift=2, levels="0,1,2,3,4,5,6,6",
)
def f2u(x): return struct.unpack("<I", struct.pack("<f", x))[0]

S = 0; P = 0; O = 64
QA = 128; QB = 160; FR = 192; NF = 8
KAD = 224; VAD = 228; ONES = 236; LS = 240; VO = 248
VK = 249; VV = 250; STAMP = 251; QT = 252
def qfrag(buf, u, s_):
    k = 2 * u + (s_ >> 1)
    if s_ & 1: return buf + 16 + 4 * k
    return QT if k == 0 else buf + 4 * (k - 1)
M0 = 240; M1 = 241
SQ, SK, SV, SO, SQC = 12, 16, 20, 24, 56
sW, sIT = 28, 29
sQ = 30
sK = 34; sV = 35
sO = 36
sKM = 40; sVM = 41; sT = 43
sD = 50
sG = 60
CLIT = "0x%08x" % f2u(128 ** -0.5 * math.log2(math.e))
OD = 96
QSTEP = 256 * 131072
def lit(x): return str(x) if x <= 64 else hex(x)

class Path:
    def __init__(s, o, role):
        s.o = o; s.role = role; s.a = Asm(); s.vm = []
        s.prefetched = 0; s.deferred = []
    def issue(s, tag): s.vm.append(("issue", tag))
    def wait(s, *tags):
        ph = Ins("VMWAIT", "wait", skip=s.a.skip); s.a.ins.append(ph); s.vm.append(("wait", tags, ph))
    def stamp(s, rt=False):
        o, a = s.o, s.a
        if not o["stamps"]: return
        if o["stamps"] == 2 and not rt: return
        a.lgkm0()
        a.salu("s_memrealtime s[44:45]" if rt == 1 else "s_memtime s[44:45]")
        a.lgkm0()
        a.salu("s_mov_b32 s47, m0")
        a.salu("s_mov_b32 m0, s46", swr={"m0"})
        a.add("v_writelane_b32 v%d, s44, m0" % STAMP, "valu", wr={STAMP})
        a.salu("s_add_u32 s46, s46, 1")
        a.salu("s_mov_b32 m0, s47", swr={"m0"})
    def align(s): s.a.ins.append(Ins(".p2align 3", "label", states=0))
    def prio(s, k): s.a.salu("s_setprio %d" % s.o["p_%s_%s" % (s.role, k)])
    def q_ops(s, head, cur=False):
        buf = QA if head == 0 else QB; so = (sO if cur else sQ) + 2 * head; tag = "QA" if head == 0 else "QB"
        def mk(u, j0, hi):
            def f():
                s.a.bload(buf + 16 * j0 + 4 * (2 * u + hi), VO, SQC if cur else SQ, sr(so + u), j0 * 256 + hi * 128, s.o["fl_q"]); s.issue(tag)
            return f
        return [mk(u, j0, hi) for u in range(2) for j0 in range(2) for hi in range(2)]
    def nsplit(s, which):
        sp = s.o[which]
        return 8 if sp == "both" else (16 if sp == s.role else 0)
    def kv_ops(s, which):
        voff, srd, sM, sB, tag, fl = (VK, SK, sKM, sK, "K", "fl_k") if which == "k" else (VV, SV, sVM, sV, "V", "fl_v")
        def mk(i):
            def f():
                if i == 0:
                    s.a.salu("s_mov_b32 m0, s%d" % sM, swr={"m0"}); s.a.salu("s_mov_b32 s%d, s%d" % (sT, sB))
                else:
                    s.a.salu("s_add_u32 m0, s%d, 0x%x" % (sM, i * 4096), swr={"m0"}); s.a.salu("s_add_u32 s%d, s%d, 0x%x" % (sT, sB, i * 4096))
                s.a.bdma(voff, srd, sr(sT), 0, s.o[fl]); s.issue(tag)
            return f
        return [mk(i) for i in range(s.nsplit(which + "split"))]
    def k_ops(s): return s.kv_ops("k")
    def v_ops(s): return s.kv_ops("v")
    def o_ops(s, head, so):
        tag = "OA" if head == 0 else "OB"
        def mk(i):
            def f():
                u = 1 - (i >> 2); j0 = (i >> 1) & 1; hi = i & 1
                s.a.bstore(OD + 4 * i, VO, SO, sr(so + u), j0 * 256 + hi * 128, s.o["fl_o"]); s.issue(tag)
            return f
        return [mk(i) for i in range(8)]
    def place(s, nslots, urgent, ustep, lazy, span=None):
        d = {}; pos = 0
        for op in urgent:
            d.setdefault(min(int(pos), nslots - 1), []).append(op); pos += ustep
        st = min(int(pos), nslots - 1)
        en = nslots if span is None else span
        if st >= en: st = max(0, en - len(lazy))
        G = s.o["grp"]
        for i, op in enumerate(lazy):
            d.setdefault(st + ((i // G * G) * (en - st)) // len(lazy), []).append(op)
        return d
    def qcur(s, head, role=None): return s.o[(role or s.role) + ("_qa" if head == 0 else "_qb")].startswith("c,")
    def lazy(s, phase):
        r = []
        for head in range(2):
            spec = s.o[s.role + ("_qa" if head == 0 else "_qb")].split(",")
            cur = spec[0] == "c"
            if cur: spec = spec[1:]
            ops = s.q_ops(head, cur); k = 0
            for x in spec:
                n = int(x[3:])
                if x[:3] == phase: r += ops[k:k + n]
                k += n
            assert k == 8
        return r
    def xchg(s, d, nb, own):
        s.a.add("v_cndmask_b32_dpp v%d, v%d, v%d, vcc quad_perm:[1,0,3,2] row_mask:0xf bank_mask:0xf" % (d, nb, own), "dpp", rd={nb, own}, wr={d})
    def flip(s): s.a.salu("s_not_b64 vcc, vcc")
    def qfix(s, head):
        buf = QA if head == 0 else QB
        s.wait("QA" if head == 0 else "QB")
        s.align()
        for k in range(4):
            A, B = buf + 4 * k, buf + 16 + 4 * k
            T = QT if k == 0 else A - 4
            for x in range(4): s.xchg(T + x, B + x, A + x)
            s.flip(); s.align()
            for x in range(4): s.xchg(B + x, A + x, B + x)
            s.flip(); s.align()
    def rdk(s, n):
        kt, s_ = divmod(n, 4)
        s.a.ds_read128(FR + 4 * (n % NF), KAD + s_, kt * 4096)
    def rdv(s, n, v=None):
        jj, dt = divmod(n, 8)
        for x in ((0, 1) if v is None else (v,)): s.a.ds_read_tr(FR + 4 * (n % NF) + 2 * x, VAD + dt, jj * 8192 + x * 4096)
    def pref(s, kind):
        if not (s.o["pre"] and s.o["compute"]): return
        for n in range(s.o["pd"]): (s.rdk if kind == "k" else s.rdv)(n)
        s.prefetched = 1
    def maxop(s, m):
        kt, x = divmod(m, 4); u, hlf = x & 1, x >> 1
        b = S + 16 * (kt >> 1) + 8 * u + 4 * (kt & 1) + 2 * hlf
        if m < 2: s.a.v("v_max_f32_e64", M0 + u, b, b + 1)
        else: s.a.v("v_max3_f32", M0 + u, M0 + u, b, b + 1)
    MLAG = 6
    def qk(s, head, side={}):
        a = s.a; buf = QA if head == 0 else QB
        s.prio("qk")
        C = s.o["compute"]; PD = s.o["pd"]
        if C and not s.prefetched:
            for n in range(PD): s.rdk(n)
        s.prefetched = 0
        for n in range(64):
            kt, s_ = divmod(n, 4)
            if C:
                for uu in range(2):
                    u = uu ^ (n & 1) if s.o["snake"] else uu
                    d = S + 16 * (kt >> 1) + 8 * u + 4 * (kt & 1)
                    a.mfma16(d, FR + 4 * (n % NF), qfrag(buf, u, s_), None if s_ == 0 else d)
                    if uu == 0 and n + PD < 64: s.rdk(n + PD)
                if n >= s.MLAG: s.maxop(n - s.MLAG)
            for op in side.get(n, []): op()
        s.prio("sm")
    def sm(s, head, side={}, pre=False):
        a = s.a; C = s.o["compute"]
        def swap(w): a.add("v_permlane%d_swap_b32 v%d, v%d" % (w, M0, M1), "permlane", rd={M0, M1}, wr={M0, M1})
        if C:
            s.align()
            for m in range(64 - s.MLAG, 64): s.maxop(m)
            swap(32)
            a.v("v_max_f32", M0, M0, M1)
            a.v("v_mov_b32", M1, M0)
            swap(16)
            a.v("v_max_f32", M0, M0, M1)
            a.v("v_mul_f32", M0, "0x%08x" % (int(CLIT, 16) | 0x80000000), M0)
            a.v("v_mov_b32", M1, M0)
            swap(32)
            s.align()
        for j in range(16):
            b = S + 8 * j
            if C:
                for x in range(8): a.v("v_fmamk_f32", b + x, b + x, CLIT, M0 + (j & 1))
            for op in side.get(j, []): op()
            if j == 15 and pre: s.pref("v")
            if C:
                for x in range(8): a.v("v_exp_f32", b + x, b + x, kind="trans")
                for x in range(4): a.v("v_cvt_pk_bf16_f32", P + 4 * j + x, b + 2 * x, b + 2 * x + 1)
    def pv(s, head, side={}):
        a = s.a
        s.prio("pv")
        C = s.o["compute"]; PD = s.o["pd"]
        if C and not s.prefetched:
            for n in range(PD): s.rdv(n)
        s.prefetched = 0
        for n in range(64):
            jj, dt = divmod(n, 8)
            if C:
                if dt == 0:
                    for u in (1, 0): a.mfma16(LS + 4 * u, ONES, P + 8 * jj + 4 * u, LS + 4 * u if jj else None)
                for uu in range(2):
                    u = uu ^ (n & 1) if s.o["snake"] else uu
                    d = O + 32 * u + 4 * dt
                    a.mfma16(d, FR + 4 * (n % NF), P + 8 * jj + 4 * u, d if jj else None)
                    if n + PD < 64: s.rdv(n + PD, uu)
            for op in side.get(n, []): op()
        s.prio("ep")
    def ep(s, head, side={}, pre=False):
        a = s.a; C = s.o["compute"]
        nd = s.o[s.role + ("_da" if head == 0 else "_db")]
        so = sO + 2 * head
        if head == 1 and nd:
            a.salu("s_mov_b32 s%d, s%d" % (sD, so)); a.salu("s_mov_b32 s%d, s%d" % (sD + 1, so + 1)); so = sD
        st = s.o_ops(head, so)
        now, s.deferred = st[:8 - nd], st[8 - nd:]
        if pre: s.pref("k")
        if C:
            a.v("v_rcp_f32", LS + 4, LS + 4, kind="trans"); a.v("v_rcp_f32", LS, LS, kind="trans")
        s.align()
        def swaps(d):
            for y in range(2): a.add("v_permlane16_swap_b32 v%d, v%d" % (d + y, d + 2 + y), "permlane", rd={d + y, d + 2 + y}, wr={d + y, d + 2 + y})
        for k, u in enumerate((1, 0)):
            for m in range(4):
                b = O + 32 * u + 8 * m
                d = 16 * k + 4 * m
                if C:
                    for x in range(8): a.v("v_mul_f32", b + x, b + x, LS + 4 * u)
                    if m: swaps(d - 4)
                    for x in range(4): a.v("v_cvt_pk_bf16_f32", d + x, b + 2 * x, b + 2 * x + 1)
                for op in side.get(4 * k + m, []): op()
            for j0 in range(2):
                for hi in range(2):
                    A = 16 * k + 8 * hi; B = A + 4
                    if C:
                        for x in range(4):
                            if j0 == 0: s.xchg(OD + 16 * k + 4 * hi + x, B + x, A + x)
                            else: s.xchg(OD + 16 * k + 8 + 4 * hi + x, A + x, B + x)
                        if j0 == 0 and hi == 0: swaps(16 * k + 12)
                if C: s.flip(); s.align()
                for op in now[4 * k + 2 * j0:4 * k + 2 * j0 + 2]: op()
        s.qfix(1 - head)
    def advance(s):
        a = s.a
        for x in range(4): a.salu("s_mov_b32 s%d, s%d" % (sO + x, sQ + x))
        for x in range(4): a.salu("s_add_u32 s%d, s%d, 0x%x" % (sQ + x, sQ + x, QSTEP))
        a.salu("s_add_u32 s%d, s%d, 0x%x" % (sK, sK, QSTEP // 2))
        a.salu("s_cmp_eq_u32 s%d, 3" % sIT)
        for srd in (SQ, SK) + ((SV,) if s.role == "lag" else ()): a.salu("s_cselect_b32 s%d, 0, s%d" % (srd + 2, srd + 2))
    def preblocks(s):
        nv = {"both": 8, "lag": 16, "lead": 0}[s.o["vsplit"]]
        L = ["lagQA"] + ["V%d" % i for i in range(nv // 4)]
        if not s.qcur(1, "lead"): L.append("leadQB")
        if not s.qcur(1, "lag"): L.append("lagQB")
        return L
    def prologue(s, pre):
        o, a, role = s.o, s.a, s.role
        if role == "lead":
            for op in s.k_ops(): op()
            for op in s.q_ops(0): op()
            if "leadQB" in pre:
                for op in s.q_ops(1): op()
            s.qfix(0)
            if not s.qcur(1) and "leadQB" not in pre:
                for op in s.q_ops(1): op()
        else:
            vo = s.v_ops(); nv = 4 * len([x for x in pre if x[0] == "V"])
            if "lagQA" in pre:
                for op in s.q_ops(0): op()
            for op in vo[:nv]: op()
            if "lagQB" in pre:
                for op in s.q_ops(1): op()
            for op in s.k_ops(): op()
            if "lagQA" not in pre:
                for op in s.q_ops(0): op()
            s.wait("K"); a.barrier()
            for op in vo[nv:]: op()
            if not s.qcur(1) and "lagQB" not in pre:
                for op in s.q_ops(1): op()
            a.salu("s_add_u32 s%d, s%d, 0x%x" % (sV, sV, QSTEP // 2))
            s.pref("k")
            s.qfix(0)
        a.lgkm0()
    def build(s):
        o, a, role = s.o, s.a, s.role
        pl = s.place
        nd = o[role + "_db"]
        a.label("L_" + role)
        if nd:
            a.salu("s_mov_b32 s%d, 0" % (SO + 2)); a.salu("s_mov_b32 s%d, 0" % sD); a.salu("s_mov_b32 s%d, 0" % (sD + 1))
        PB = s.preblocks()
        levels = [int(x) for x in str(o["levels"]).split(",")]
        var = {}
        for g, lv in enumerate(levels):
            key = tuple(x for x in PB[:lv] if (x == "leadQB") == (role == "lead"))
            var.setdefault(key, []).append(g)
        keys = list(var)
        for k, key in enumerate(keys[1:], 1):
            for g in var[key]:
                a.salu("s_cmp_eq_u32 s%d, %d" % (sG, g)); a.add("s_cbranch_scc1 L_pro_%s%d" % (role, k), "branch")
        for k, key in enumerate(keys):
            s.vm.append(("pro",))
            if k: a.label("L_pro_%s%d" % (role, k))
            s.prologue(key)
            if k < len(keys) - 1: a.add("s_branch L_loop_" + role, "branch")
        s.vm.append(("loop",))
        a.label("L_loop_" + role)
        s.advance()
        vs, ks = o["vspread"], o["kspread"]
        defB = s.o_ops(1, sD)[8 - nd:]
        def so_on():
            if nd and not o["nomem"]: a.salu("s_mov_b32 s%d, 0x8000000" % (SO + 2))
        if role == "lead":
            s.wait("K"); a.barrier(); s.stamp()
            s.qk(0, pl(64, s.v_ops(), vs, defB + s.lazy("qkA"), o["dspan"] if nd else None)); so_on(); s.stamp()
            a.salu("s_add_u32 s%d, s%d, 0x%x" % (sV, sV, QSTEP // 2))
            s.sm(0, pl(16, [], 0, s.lazy("smA"))); s.stamp()
            s.wait("V"); a.barrier(); s.stamp()
            s.pv(0, pl(64, [], 0, s.lazy("pvA"))); s.stamp()
            s.ep(0, pl(8, [], 0, s.lazy("epA")), pre=True); s.stamp()
            s.qk(1, pl(64, [], 0, s.deferred + s.lazy("qkB"), o["dspan"] if s.deferred else None)); s.stamp()
            s.sm(1, pl(16, [], 0, s.lazy("smB")), pre=True); s.stamp()
            a.barrier(); s.stamp()
            s.pv(1, pl(64, s.k_ops(), ks, s.lazy("pvB"))); s.stamp()
            s.ep(1, pl(8, [], 0, s.lazy("epB"))); s.stamp()
        else:
            s.stamp()
            s.qk(0, pl(64, [], 0, defB + s.lazy("qkA"), o["dspan"] if nd else None)); so_on(); s.stamp()
            s.wait("V"); a.barrier(); s.stamp()
            s.sm(0, pl(16, [], 0, s.lazy("smA")), pre=True); s.stamp()
            s.pv(0, pl(64, [], 0, s.lazy("pvA"))); s.stamp()
            s.ep(0, pl(8, [], 0, s.lazy("epA")), pre=True); s.stamp()
            s.qk(1, pl(64, [], 0, s.deferred + s.lazy("qkB"), o["dspan"] if s.deferred else None)); s.stamp()
            a.lgkm0(); a.barrier(); s.stamp()
            s.sm(1, pl(16, s.k_ops(), ks / 4.0, s.lazy("smB")), pre=True); s.stamp()
            s.pv(1, pl(64, [], 0, s.lazy("pvB"))); s.stamp()
            a.lgkm0()
            s.wait("K"); a.barrier(); s.stamp()
            s.ep(1, pl(8, s.v_ops(), vs / 8.0, s.lazy("epB")), pre=True)
            a.salu("s_add_u32 s%d, s%d, 0x%x" % (sV, sV, QSTEP // 2))
        a.lgkm0()
        a.salu("s_add_u32 s%d, s%d, 1" % (sIT, sIT))
        a.salu("s_cmp_lt_u32 s%d, 4" % sIT)
        a.add("s_cbranch_scc1 L_loop_" + role, "branch")
        s.vm.append(("end",))
        for op in s.deferred: op()
        if role == "lead": a.barrier()
        a.vm(0)
        if o["stamps"]:
            s.stamp(2)
            a.salu("s_mov_b32 s46, 61")
            s.stamp(1)
            a.salu("s_mov_b32 s52, s48"); a.salu("s_and_b32 s53, s49, 0xffff"); a.salu("s_mov_b32 s54, 0x1000000"); a.salu("s_mov_b32 s55, 0x20000")
            a.salu("s_lshl_b32 s47, s2, 3"); a.salu("s_add_u32 s47, s47, s%d" % sW); a.salu("s_lshl_b32 s47, s47, 8")
            a.add("v_mbcnt_lo_u32_b32 v1, -1, 0", "valu", wr={1}); a.add("v_mbcnt_hi_u32_b32 v1, -1, v1", "valu", rd={1}, wr={1})
            a.v("v_lshlrev_b32", 1, "2", 1)
            a.add("buffer_store_dword v%d, v1, s[52:55], s47 offen" % STAMP, "vstore", rd={1, STAMP})
            a.vm(0)
        a.add("s_endpgm", "branch")
        li = s.vm.index(("loop",)); le = s.vm.index(("end",))
        body = s.vm[li + 1:le]
        pidx = [k for k, ev in enumerate(s.vm[:li]) if ev == ("pro",)] + [li]
        res = {}
        for v in range(len(pidx) - 1):
            pro = s.vm[pidx[v] + 1:pidx[v + 1]]
            hist = []
            for it, seq in enumerate([pro, body, body, body, body]):
                for ev in seq:
                    if ev[0] == "issue": hist.append(ev[1])
                    else:
                        n = 63
                        for tg in ev[1]:
                            c = 0
                            for t2 in reversed(hist):
                                if t2 == tg: break
                                c += 1
                            else: c = 63
                            n = min(n, c)
                        r = res.setdefault(id(ev[2]), {})
                        r[it] = min(n, r.get(it, 63))
        out = []; nl = 0
        for i in a.ins:
            if i.text != "VMWAIT": out.append(i); continue
            r = [v for k, v in sorted(res[id(i)].items())]
            if len(r) == 4 and r[0] > r[1]: r[0] = r[1]
            hi = max(r)
            if hi < 63: out.append(Ins("s_waitcnt vmcnt(%d)" % hi, "wait", skip=i.skip))
            for v in sorted(set(r), reverse=True):
                if v == hi: continue
                its = [k for k, x in enumerate(r) if x == v]
                nl += 1; lab = "L_w%s%d" % (role, nl)
                assert its == [0], r
                out.append(Ins("s_cmp_lg_u32 s%d, 0" % sIT, "salu", skip=i.skip))
                out.append(Ins("s_cbranch_scc1 " + lab, "branch", skip=i.skip))
                out.append(Ins("s_waitcnt vmcnt(%d)" % v, "wait", skip=2))
                out.append(Ins(lab + ":", "label", states=0))
        return out

def gen(**kw):
    o = dict(DEF); o.update(kw)
    for k in kw: assert k in DEF, k
    a = Asm()
    a.salu("s_cmp_ge_u32 s2, 0x100")
    a.add("s_cbranch_scc0 L_go", "branch")
    a.add("s_endpgm", "branch")
    a.label("L_go")
    a.salu("s_load_dwordx8 s[4:11], s[0:1], 0")
    if o["stamps"]: a.salu("s_load_dwordx2 s[48:49], s[0:1], 40")
    a.v("v_lshrrev_b32", 10, "6", 0)
    a.v("v_and_b32", 1, "63", 0)
    a.add("v_readfirstlane_b32 s%d, v10" % sW, "readlane", rd={10}, swr={sW})
    L = 1
    a.v("v_lshrrev_b32", 2, "4", L)
    a.v("v_and_b32", 3, "15", L)
    a.v("v_and_b32", 7, "7", L)
    a.v("v_xor_b32", 4, 3, 2); a.v("v_lshlrev_b32", 4, "4", 4); a.v("v_lshl_add_u32", 4, 2, "8", 4)
    a.v("v_and_b32", 9, "3", 10); a.v("v_lshlrev_b32", 9, "6", 9); a.v("v_xor_b32", VK, 4, 9)
    a.v("v_and_b32", 9, "1", L); a.v("v_lshl_add_u32", 9, 2, "1", 9); a.v("v_lshlrev_b32", 9, "4", 9)
    a.v("v_bfe_u32", 8, L, "1", "3"); a.v("v_lshl_add_u32", VO, 8, "9", 9)
    a.v("v_and_b32", 9, "1", 10); a.v("v_lshlrev_b32", 9, "7", 9); a.v("v_xor_b32", VV, 4, 9)
    a.salu("s_mov_b32 vcc_lo, 0x55555555"); a.salu("s_mov_b32 vcc_hi, 0x55555555")
    a.salu("s_and_b32 s3, s%d, 3" % sW, srd={sW})
    a.salu("s_lshl_b32 s%d, s3, 10" % sKM); a.salu("s_mov_b32 s%d, s%d" % (sVM, sKM))
    a.salu("s_lshr_b32 s42, s%d, 2" % sW); a.salu("s_lshl_b32 s42, s42, 15")
    if o["ksplit"] == "both": a.salu("s_add_u32 s%d, s%d, s42" % (sKM, sKM))
    if o["vsplit"] == "both": a.salu("s_add_u32 s%d, s%d, s42" % (sVM, sVM))
    if o["xcd"]:
        a.salu("s_and_b32 s3, s2, 7"); a.salu("s_lshl_b32 s3, s3, 5"); a.salu("s_lshr_b32 s42, s2, 3"); a.salu("s_add_u32 s3, s3, s42")
    else: a.salu("s_mov_b32 s3, s2")
    a.salu("s_lshr_b32 s%d, s2, %d" % (sG, 3 + o["gshift"])); a.salu("s_and_b32 s%d, s%d, %d" % (sG, sG, len(str(o["levels"]).split(",")) - 1))
    a.salu("s_lshl_b32 s%d, s3, 17" % sQ)
    b0, b1, b2, bp = {0: (13, 14, 15, 16), 1: (13, 16, 14, 15), 2: (13, 16, 15, 14), 3: (13, 14, 16, 15)}[o["tmap"]]
    for k, b in enumerate((b0, b1, b2)):
        a.salu("s_lshr_b32 s42, s%d, %d" % (sW, k)); a.salu("s_and_b32 s42, s42, 1"); a.salu("s_lshl_b32 s42, s42, %d" % b); a.salu("s_add_u32 s%d, s%d, s42" % (sQ, sQ))
    a.salu("s_add_u32 s%d, s%d, 0x1000" % (sQ + 1, sQ)); a.salu("s_add_u32 s%d, s%d, 0x%x" % (sQ + 2, sQ, 1 << bp)); a.salu("s_add_u32 s%d, s%d, 0x%x" % (sQ + 3, sQ, (1 << bp) + 0x1000))
    a.salu("s_lshl_b32 s3, s3, 16")
    a.salu("s_add_u32 s%d, s3, s%d" % (sK, sKM)); a.salu("s_add_u32 s%d, s3, s%d" % (sV, sVM))
    a.salu("s_add_u32 s%d, s%d, 0x10000" % (sVM, sVM))
    a.salu("s_mov_b32 s%d, 0" % sIT)
    a.v("v_lshlrev_b32", 8, "1", 2); a.v("v_xor_b32", 8, 8, 3); a.v("v_lshlrev_b32", 8, "4", 8); a.v("v_lshl_add_u32", KAD, 3, "8", 8)
    for s_ in range(1, 4): a.v("v_xor_b32", KAD + s_, lit((8 * (s_ >> 1) + (s_ & 1)) * 16), KAD)
    a.v("v_lshrrev_b32", 8, "2", L)
    a.v("v_lshlrev_b32", 9, "8", 8)
    a.v("v_and_b32", 8, "3", 8); a.v("v_lshl_add_u32", 9, 8, "4", 9)
    a.v("v_and_b32", 8, "1", 2); a.v("v_lshl_add_u32", 9, 8, "7", 9)
    a.v("v_bfe_u32", 8, L, "1", "1"); a.v("v_lshl_add_u32", 9, 8, "6", 9)
    a.v("v_and_b32", 8, "1", L); a.v("v_lshl_add_u32", 9, 8, "3", 9)
    a.v("v_add_u32", VAD, "0x10000", 9)
    for t in range(1, 8): a.v("v_xor_b32", VAD + t, lit((8 * (t >> 2) + 2 * (t & 1) + ((t >> 1) & 1)) * 16), VAD)
    for x in range(4): a.v("v_mov_b32", ONES + x, "0x3f803f80")
    a.lgkm0()
    for srd, ptr, nb in ((SK, 6, 1 << 26), (SQ, 4, 1 << 27), (SV, 8, 1 << 26), (SO, 10, 1 << 27), (SQC, 4, 1 << 27)):
        a.salu("s_mov_b32 s%d, s%d" % (srd, ptr)); a.salu("s_and_b32 s%d, s%d, 0xffff" % (srd + 1, ptr + 1))
        a.salu("s_mov_b32 s%d, 0x%x" % (srd + 2, 0 if o["nomem"] else nb)); a.salu("s_mov_b32 s%d, 0x20000" % (srd + 3))
    if o["stamps"]:
        p0 = Path(o, "x"); p0.a = a
        a.salu("s_mov_b32 s46, 60"); a.v("v_mov_b32", STAMP, "0")
        p0.stamp(1)
        a.salu("s_getreg_b32 s44, hwreg(HW_REG_XCC_ID)"); a.salu("s_mov_b32 m0, 62")
        a.add("v_writelane_b32 v%d, s44, m0" % STAMP, "valu", wr={STAMP})
        a.salu("s_mov_b32 s46, 0")
        p0.stamp(2)
    a.salu("s_cmp_ge_u32 s%d, 4" % sW)
    a.add("s_cbranch_scc%d L_lag" % (0 if o["swap"] else 1), "branch")
    outs = []; added = 0
    for role in ("lead", "lag"):
        p = Path(o, role); body = p.build()
        full, ad = pad_hazards(a.ins + body); added += ad
        i0 = [k for k, i in enumerate(full) if i.text == "L_loop_%s:" % role][0]
        i1 = [k for k, i in enumerate(full) if i.text == "s_cbranch_scc1 L_loop_" + role][0]
        pad_hazards(full[:i1 + 1] + full[i0:], verify=True)
        ib = [k for k, i in enumerate(full) if i.text == "L_%s:" % role][0]
        if role == "lead": outs += full
        else: outs += [Ins(".p2align 6", "label", states=0)] + full[ib:]
    hdr = open("standalone__gqa_softmax__near_ridge.s.ref").read().split("\n")
    head = [l for l in hdr if l.startswith(";") and "@launch" not in l][:9]
    txt = "\n".join(head) + "\n; @launch grid=(256,1,1) block=(512,1,1) lds=131072\n"
    txt += "; generated by my own generator script (options: %s)\n" % json.dumps(o)
    KN = "standalone__gqa_softmax__near_ridge_kernel"
    txt += '.amdgcn_target "amdgcn-amd-amdhsa--gfx950"\n.text\n.globl %s\n.p2align 8\n.type %s,@function\n%s:\n' % (KN, KN, KN)
    txt += render(outs) + "\n"
    txt += """.section .rodata,"a"
.p2align 6
.amdhsa_kernel %s
  .amdhsa_next_free_vgpr 256
  .amdhsa_next_free_sgpr 64
  .amdhsa_accum_offset 256
  .amdhsa_group_segment_fixed_size 0
  .amdhsa_kernarg_size 48
  .amdhsa_user_sgpr_count 2
  .amdhsa_user_sgpr_kernarg_segment_ptr 1
  .amdhsa_system_sgpr_workgroup_id_x 1
.end_amdhsa_kernel
""" % KN
    return txt, added, len(outs)

if __name__ == "__main__":
    outf = sys.argv[1]
    kw = {}
    for x in sys.argv[2:]:
        k, v = x.split("=", 1)
        if k.startswith("fl_"): v = (" " + v.replace("+", " ")) if v else ""
        elif v.lstrip("-").isdigit(): v = int(v)
        kw[k] = v
    txt, added, n = gen(**kw)
    open(outf, "w").write(txt)
    print(outf, "instrs", n, "nop states added", added)
```
